```python
import torch

def _softmax(x, axis=-1):
    return torch.softmax(x, dim=axis)
def _gelu(x):
    return torch.nn.functional.gelu(x, approximate="tanh")
def _silu(x):
    return torch.nn.functional.silu(x)
def _sigmoid(x):
    return torch.sigmoid(x)
def _layernorm(x, axis=-1, eps=1e-5):
    m = x.mean(dim=axis, keepdim=True)
    v = x.var(dim=axis, keepdim=True, unbiased=False)
    return (x - m) / torch.sqrt(v + eps)
def _scatter_add(tgt, idx, src, axis=0):
    return tgt.clone().index_add_(axis, idx, src)
def _segment_sum(src, seg, n):
    out = torch.zeros((n,) + src.shape[1:], dtype=src.dtype)
    return out.index_add_(0, seg, src)
def _pad(x, pw):
    flat = tuple(v for pair in reversed(pw) for v in pair)
    return torch.nn.functional.pad(x, flat)

kernel_name = 'interleave_layers__sliding_local_dilated__linear_kernel_hedgehog__prompt'

def setup_inputs():

    _w = (lambda a: (lambda t: t.to(torch.bfloat16) if t.is_floating_point() else t)(torch.as_tensor(a)))
    def _A_setup():
        B, S, D = 1, 2048, 512
        return {
            "x": _w((lambda *s: torch.randn(*s, dtype=torch.bfloat16) * 0.05)(B, S, D)),
            "wqkv": _w((lambda *s: torch.randn(*s, dtype=torch.bfloat16) * 0.05)(D, 3 * D)),
            "wo": _w((lambda *s: torch.randn(*s, dtype=torch.bfloat16) * 0.05)(D, D)),
        }
    _A_in = _A_setup()

    def _B_setup():
        B, S, D, H = 1, 2048, 512, 32
        Dh = D // H
        return {
            "x": _w((lambda *s: torch.randn(*s, dtype=torch.bfloat16) * 0.05)(B, S, D)),
            "wqkv": _w((lambda *s: torch.randn(*s, dtype=torch.bfloat16) * 0.4)(D, 3 * D)),
            "w_phi": _w((lambda *s: torch.randn(*s, dtype=torch.bfloat16) * 0.4)(H, Dh, Dh) * (Dh ** -0.5)),
            "wo": _w((lambda *s: torch.randn(*s, dtype=torch.bfloat16) * 0.1)(D, D)),
        }
    _B_in = _B_setup()

    return {
        "A_x": _A_in["x"],
        "A_wqkv": _A_in["wqkv"],
        "A_wo": _A_in["wo"],
        "B_x": _B_in["x"],
        "B_wqkv": _B_in["wqkv"],
        "B_w_phi": _B_in["w_phi"],
        "B_wo": _B_in["wo"],
    }

def reference(A_x, A_wqkv, A_wo, B_x, B_wqkv, B_w_phi, B_wo):
    def _A_ref(x, wqkv, wo):
        B, S, D = x.shape
        H = 32; Dh = D // H
        W, dil = 8, 2
        qkv = (lambda x, *d: x.permute(*d))((x @ wqkv).reshape(B, S, 3, H, Dh), 2, 0, 3, 1, 4)
        q, k, v = qkv[0], qkv[1], qkv[2]
        scale = Dh ** -0.5
        pos = torch.arange(S)
        off = torch.arange(W) * dil
        idx = pos[:, None] - off[None, :]
        mask = idx >= 0
        idx_c = torch.where(mask, idx, 0).reshape(-1)
        kg = k[:, :, idx_c, :].reshape(B, H, S, W, Dh)
        vg = v[:, :, idx_c, :].reshape(B, H, S, W, Dh)
        logits = torch.einsum("bhsd,bhswd->bhsw", q, kg) * scale
        logits = torch.where(mask[None, None, :, :], logits, -1e9)
        attn = _softmax(logits, axis=-1)
        o = torch.einsum("bhsw,bhswd->bhsd", attn, vg)
        return (lambda x, *d: x.permute(*d))(o, 0, 2, 1, 3).reshape(B, S, D) @ wo

    def _B_ref(x, wqkv, w_phi, wo):
        B, S, D = x.shape
        H = 32; Dh = D // H
        qkv = (lambda x, *d: x.permute(*d))((x @ wqkv).reshape(B, S, 3, H, Dh), 2, 0, 3, 1, 4)
        q, k, v = qkv[0], qkv[1], qkv[2]
        pq = torch.einsum("bhsd,hdf->bhsf", q, w_phi)
        pk = torch.einsum("bhsd,hdf->bhsf", k, w_phi)
        phi_q = torch.concatenate([_softmax(pq, axis=-1), _softmax(-pq, axis=-1)], axis=-1)
        phi_k = torch.concatenate([_softmax(pk, axis=-1), _softmax(-pk, axis=-1)], axis=-1)
        kv = torch.einsum("bhsf,bhsd->bhfd", phi_k, v)
        z  = torch.einsum("bhsf->bhf", phi_k)
        num = torch.einsum("bhqf,bhfd->bhqd", phi_q, kv)
        den = torch.einsum("bhqf,bhf->bhq", phi_q, z)[..., None] + 1e-6
        o = num / den
        return (lambda x, *d: x.permute(*d))(o, 0, 2, 1, 3).reshape(B, S, D) @ wo

    x = A_x
    x = x + _A_ref(_layernorm(x, axis=-1), A_wqkv, A_wo)
    x = x + _B_ref(_layernorm(x, axis=-1), B_wqkv, B_w_phi, B_wo)
    x = x + _A_ref(_layernorm(x, axis=-1), A_wqkv, A_wo)
    x = x + _B_ref(_layernorm(x, axis=-1), B_wqkv, B_w_phi, B_wo)
    return x
```

```python
import re

def R(kind, lo, n=1):
    return f"{kind}{lo}" if n == 1 else f"{kind}[{lo}:{lo+n-1}]"
def v(lo, n=1): return R("v", lo, n)
def a(lo, n=1): return R("a", lo, n)
def s(lo, n=1): return R("s", lo, n)

_reg_re = re.compile(r"^-?(?:abs\()?([vas])(?:(\d+)|\[(\d+):(\d+)\])\)?$")
def regs_of(op):
    op = op.strip()
    if op in ("vcc", "vcc_lo", "vcc_hi"): return {("s", "vcc")}
    if op in ("exec",): return {("s", "exec")}
    if op == "m0": return {("s", "m0")}
    m = _reg_re.match(op)
    if not m: return set()
    k = m.group(1)
    if m.group(2) is not None: lo = hi = int(m.group(2))
    else: lo, hi = int(m.group(3)), int(m.group(4))
    return {(k, r) for r in range(lo, hi + 1)}

TRANS = ("v_exp_f32", "v_log_f32", "v_rcp_f32", "v_rsq_f32", "v_sqrt_f32", "v_sin_f32", "v_cos_f32")

class Ins:
    def __init__(self, text):
        self.text = text
        t = text.split(";")[0].strip()
        self.label = t.endswith(":")
        self.directive = t.startswith(".")
        self.mn = ""
        self.rd = set(); self.wr = set()
        self.cls = "none"; self.srcA = set(); self.srcB = set(); self.srcC = set(); self.data = set()
        self.ws = 1
        if self.label or self.directive or not t:
            self.ws = 0; return
        parts = t.split(None, 1)
        mn = parts[0]; self.mn = mn
        rest = parts[1] if len(parts) > 1 else ""
        ops = []; cur = ""; depth = 0
        for ch in rest:
            if ch in "[(": depth += 1
            if ch in "])": depth -= 1
            if ch == "," and depth == 0: ops.append(cur.strip()); cur = ""
            else: cur += ch
        if cur.strip(): ops.append(cur.strip())
        mods = ""
        if ops:
            sp = ops[-1].split(None, 1)
            ops[-1] = sp[0]
            if len(sp) > 1: mods = sp[1]
        self.ops = ops; self.mods = mods
        rs = [regs_of(o) for o in ops]
        U = lambda xs: set().union(*xs) if xs else set()
        if mn == "s_nop":
            self.cls = "nop"; self.ws = int(ops[0], 0) + 1
        elif mn.startswith("v_mfma"):
            self.cls = "mfma"; self.wr = rs[0]; self.srcA, self.srcB, self.srcC = rs[1], rs[2], rs[3]
            self.rd = rs[1] | rs[2] | rs[3]
        elif mn.startswith("v_"):
            self.cls = "valu"
            base = mn.replace("_e32", "").replace("_e64", "").replace("_dpp", "")
            self.base = base
            self.trans = base in TRANS
            self.dpp = mn.endswith("_dpp")
            self.perml = base.startswith("v_permlane")
            self.dot = base.startswith("v_dot")
            if self.perml: self.wr = rs[0] | rs[1]; self.rd = rs[0] | rs[1]
            elif base.startswith("v_cmp"): self.wr = rs[0]; self.rd = U(rs[1:])
            elif base in ("v_add_co_u32", "v_sub_co_u32", "v_addc_co_u32"): self.wr = rs[0] | rs[1]; self.rd = U(rs[2:])
            else:
                self.wr = rs[0]; self.rd = U(rs[1:])
                if base in ("v_fmac_f32", "v_dot2c_f32_bf16", "v_writelane_b32") or self.dpp: self.rd |= rs[0]
        elif mn.startswith("ds_"):
            self.cls = "ds"
            if mn.startswith("ds_read") or mn.startswith("ds_bpermute") or mn.startswith("ds_swizzle"):
                self.wr = rs[0]; self.rd = U(rs[1:])
            else: self.rd = U(rs)
        elif mn.startswith("buffer_") or mn.startswith("global_"):
            self.cls = "vmem"
            self.lds = bool(re.search(r"\blds\b", mods)) or "_lds_" in mn
            if "load" in mn and not self.lds:
                self.wr = rs[0]; self.rd = U(rs[1:])
                if "d16" in mn: self.rd |= rs[0]
            elif "store" in mn:
                self.rd = U(rs)
                self.data = rs[0] if mn.startswith("buffer_") else rs[1]
                self.wide = mn.endswith("x4") or mn.endswith("x3")
            else:
                self.rd = U(rs)
            if self.lds: self.rd |= {("s", "m0")}
        elif mn.startswith("s_"):
            self.cls = "salu"
            if mn.startswith(("s_cmp", "s_cbranch", "s_branch", "s_waitcnt", "s_barrier", "s_endpgm", "s_sleep", "s_setprio", "s_bitcmp")):
                self.rd = U(rs)
            elif mn.startswith("s_load") or mn.startswith("s_mem"):
                self.cls = "smem"; self.wr = rs[0]; self.rd = U(rs[1:])
            else:
                self.wr = rs[0] if rs else set(); self.rd = U(rs[1:])
                if "saveexec" in mn: self.wr |= {("s", "exec")}
        else:
            raise ValueError("unknown instruction: " + text)

def need_ws(p, c):
    n = 0
    isv = lambda S: {r for r in S if r[0] in "va"}
    iss = lambda S: {r for r in S if r[0] == "s"}
    if p.cls == "valu":
        pw = isv(p.wr); ps = iss(p.wr)
        if c.cls == "mfma" and pw & c.rd: n = max(n, 2)
        if c.cls == "valu":
            if (c.perml or c.dpp) and pw & c.rd: n = max(n, 2)
            if c.base in ("v_readfirstlane_b32", "v_readlane_b32") and pw & c.rd: n = max(n, 1)
            if p.trans and not c.trans and pw & c.rd: n = max(n, 1)
            if p.trans and c.trans and pw & c.rd: n = max(n, 1)
            if ps & c.rd: n = max(n, 2)
            if p.dot and (pw & (c.rd | c.wr)):
                same = c.dot and c.base == p.base
                if same and len(c.ops) >= 4 and not (pw & (regs_of(c.ops[1]) | regs_of(c.ops[2]))): pass
                else: n = max(n, 3)
        if p.dot and c.cls in ("mfma", "ds", "vmem") and pw & (c.rd | c.wr): n = max(n, 3)
        if c.cls == "vmem" and ps & c.rd: n = max(n, 5)
        if c.cls == "salu" and ps & c.rd: n = max(n, 1)
    if p.cls == "mfma":
        D = p.wr
        if c.cls == "mfma":
            if D & (c.srcA | c.srcB): n = max(n, 8)
            if D & c.srcC:
                if c.srcC == D and c.mn == p.mn and "16x16x32" in p.mn: pass
                else: n = max(n, 6)
            elif D & c.wr: n = max(n, 1 if c.mn == p.mn else 6)
        elif c.cls == "valu":
            if D & (c.rd | c.wr): n = max(n, 8)
            if p.srcC & c.wr: n = max(n, 3)
        elif c.cls in ("ds", "vmem"):
            if D & (c.rd | c.wr): n = max(n, 8)
            if p.srcC & c.wr: n = max(n, 3)
    if p.cls == "vmem" and p.data and getattr(p, "wide", False):
        if p.data & c.wr: n = max(n, 2)
    if p.cls == "salu" and ("s", "m0") in p.wr and c.cls == "vmem" and c.lds: n = max(n, 1)
    return n

class Asm:
    def __init__(self):
        self.ins = []
        self.vm = 0
        self.lg = 0
        self.vm_done = 0
        self.lg_done = 0
        self.nlabel = 0
    def e(self, text):
        for line in text.strip().split("\n"):
            line = line.strip()
            if not line or line.startswith(";"):
                continue
            i = Ins(line); self.ins.append(i)
            if i.cls == "vmem": self.vm += 1
            if i.cls == "ds": self.lg += 1
        return self
    def vmop(self, text):
        self.e(text); return self.vm
    def dsop(self, text):
        self.e(text); return self.lg
    def wait(self, vm=None, lg=None):
        parts = []
        if vm is not None and vm > self.vm_done:
            n = min(self.vm - vm, 63); parts.append(f"vmcnt({n})"); self.vm_done = self.vm - n
        if lg is not None and lg > self.lg_done:
            n = min(self.lg - lg, 15); parts.append(f"lgkmcnt({n})"); self.lg_done = self.lg - n
        if parts: self.e("s_waitcnt " + " ".join(parts))
    def wait_all(self, vm=True, lg=True):
        parts = []
        if vm: parts.append("vmcnt(0)"); self.vm_done = self.vm
        if lg: parts.append("lgkmcnt(0)"); self.lg_done = self.lg
        self.e("s_waitcnt " + " ".join(parts))
    def label(self, name=None):
        if name is None:
            self.nlabel += 1; name = f"L{self.nlabel}"
        return name
    def place(self, name):
        self.e(name + ":")
    def pad(self):
        out = []
        nn = 0
        sites = {}
        def need_from(pos, dist, c):
            need = 0
            while pos >= 0 and dist < 9:
                p = out[pos]
                if p.label:
                    for b in sites.get(p.text.strip()[:-1], []):
                        need = max(need, need_from(b, dist, c))
                    q = pos - 1
                    while q >= 0 and out[q].ws == 0 and not out[q].label: q -= 1
                    if q >= 0 and out[q].mn == "s_branch": return need
                elif p.ws:
                    if p.cls != "nop": need = max(need, need_ws(p, c) - dist)
                    dist += p.ws
                pos -= 1
            return need
        for c in self.ins:
            if c.ws > 0 and c.cls != "nop":
                need = need_from(len(out) - 1, 0, c)
                if need > 0:
                    out.append(Ins(f"s_nop {need-1}")); nn += need
            out.append(c)
            if c.mn.startswith(("s_cbranch", "s_branch")):
                sites.setdefault(c.ops[0], []).append(len(out) - 1)
        self.ins = out
        return nn
    def text(self):
        return "\n".join(("    " + i.text) if not i.label else i.text for i in self.ins)
```

```python
import sys
from asmlib import *
from wrap import wrap, NAME

LDS_X = 0; LDS_H = 65536; LDS_Y = 81920; LDS_T = 155648; LDS_SIZE = 163840
T_M = LDS_T; T_A = LDS_T + 512; T_HP = LDS_T + 1024; T_CS = LDS_T + 1536; T_DUM = LDS_T + 3072; T_MASK = LDS_T + 4096
WS_FLAG = 0; WS_O = 0x100000; WS_X = 0x900000; WS_ST = 0xF00000; WS_H = 0xF60000; WS_HS = 0xFE4000
WS_KV1 = 0xFF0000; WS_KV2 = 0x15F0000; WS_Z2 = 0x1670000; WS_TS = 0x1680000; WS_SIZE = 0x16C0000
H_O = 0; H_X = 4; H_K1 = 7; H_K2 = 9; H_HALO = 11
sW, sJ, sR, sXC, sRB = 3, 4, 5, 6, 7
SRD_X, SRD_WA, SRD_WOA, SRD_WB, SRD_WOB, SRD_PHI, SRD_OUT, SRD_WS, SRD_DBG = 8, 12, 16, 20, 24, 28, 32, 36, 40
sLOC, sSPIN, sN, sT0, sT1, sT2, sT3 = 44, 45, 46, 47, 48, 49, 50
sEX = 52
sL2E = 54
sONE = 56
sANN = 57
sM8, sMD = 58, 60
sTS = 62
sOST = 64
sFL = 65
sRH = 66
sT4, sT5, sPO = 68, 69, 70
vL16 = 0; vTS = 1; vXO = 2; vPHI = 10
RING = 28; ACCQ = 60; ACCK = 76; ACCV = 96; CS = 116; ONES = 24
LOG2E = 0x3fb8aa3b

def wreg(typ, kk, sec):
    n = kk * 3 + sec
    if typ == 0: return a(4 * n, 4), "a", 4 * n
    if n < 16: return a(192 + 4 * n, 4), "a", 192 + 4 * n
    return v(128 + 4 * (n - 16), 4), "v", 128 + 4 * (n - 16)

class Gen:
    def __init__(self, dbg=False, stop_after=None):
        self.A = Asm(); self.dbg = dbg; self.nts = 0; self.tsnames = []
        self.stop_after = stop_after
    def e(self, t): self.A.e(t)
    def eu(self, t):
        vm, lg = self.A.vm, self.A.lg
        self.A.e(t); self.A.vm, self.A.lg = vm, lg
    def ts(self, name):
        if not self.dbg: return
        A = self.A
        A.e(f"s_memrealtime {s(sTS,2)}"); A.wait_all(vm=False)
        A.e(f"v_writelane_b32 {v(vTS)}, {s(sTS)}, {self.nts}")
        self.tsnames.append(name); self.nts += 1
        if name in ("start", "end"):
            A.e(f"s_memtime {s(sTS,2)}"); A.wait_all(vm=False)
            A.e(f"v_writelane_b32 {v(vTS)}, {s(sTS)}, {62 if name == 'start' else 63}")
    def lane(self, dst):
        self.e(f"v_lshrrev_b32 {v(dst)}, 4, {v(vL16)}")
    def mfma(self, d, x, y, c, k16=False):
        op = "v_mfma_f32_16x16x16_bf16" if k16 else "v_mfma_f32_16x16x32_bf16"
        self.e(f"{op} {d}, {x}, {y}, {c}")
    def store2(self, lines):
        A = self.A; l1, l2 = A.label(), A.label()
        A.e(f"s_cmp_eq_u32 {s(sLOC)}, 0"); A.e(f"s_cbranch_scc1 {l1}")
        for t in lines: A.e(t)
        A.e(f"s_branch {l2}"); A.place(l1)
        for t in lines: self.eu(t + " sc1")
        A.place(l2)
    def flag(self, hop, glob, tmp, tracked=True):
        A = self.A
        if tracked: A.wait_all(lg=False)
        else: self.e("s_waitcnt vmcnt(0)")
        self.e(f"""
        s_add_u32 {s(sT0)}, {s(sFL)}, {WS_FLAG + hop * 32768}
        v_mov_b32 {v(tmp)}, 1
        v_mov_b32 {v(tmp+1)}, 0
        s_mov_b64 exec, 1""")
        line = f"buffer_store_dword {v(tmp)}, {v(tmp+1)}, {s(SRD_WS,4)}, {s(sT0)} offen"
        if glob:
            (self.e if tracked else self.eu)(line + " sc1")
        else:
            assert tracked
            self.store2([line])
        self.e("s_mov_b64 exec, -1")
    def poll(self, va, soff, tmp, tracked=True):
        A = self.A; lp, ld = A.label(), A.label()
        self.e(f"s_mov_b32 {s(sSPIN)}, 0x40000")
        A.place(lp)
        self.eu(f"buffer_load_dword {v(tmp)}, {v(va)}, {s(SRD_WS,4)}, {soff} offen sc1")
        self.e(f"""
        s_sub_u32 {s(sSPIN)}, {s(sSPIN)}, 1
        s_cbranch_scc1 L_end
        s_waitcnt vmcnt(0)
        v_cmp_ne_u32 vcc, 1, {v(tmp)}
        s_cbranch_vccnz {lp}""")
        if tracked: A.vm_done = A.vm

    def prologue(self):
        A = self.A; e = self.e
        e(f"""
        s_cmp_ge_u32 s2, 256
        s_cbranch_scc1 L_end
        s_load_dwordx16 s[64:79], s[0:1], 0
        s_load_dwordx4 s[80:83], s[0:1], 64
        s_getpc_b64 s[84:85]
        L_pc:
        s_mov_b32 m0, {T_DUM}
        v_lshlrev_b32 v12, 7, v0
        v_min_u32 v13, L_end-L_pc, v12
        v_lshrrev_b32 v14, 6, v0
        global_load_lds_dword v13, s[84:85]
        v_add_u32 v12, 0x8000, v12
        v_min_u32 v13, L_end-L_pc, v12
        v_readfirstlane_b32 {s(sW)}, v14
        global_load_lds_dword v13, s[84:85]
        v_and_b32 v15, 63, v0
        v_lshlrev_b32 {v(vL16)}, 4, v15
        v_mov_b32 {v(vTS)}, 0
        s_and_b32 {s(sXC)}, s2, 7
        s_lshr_b32 {s(sT0)}, s2, 3
        s_and_b32 {s(sJ)}, {s(sT0)}, 7
        s_lshr_b32 {s(sRB)}, {s(sT0)}, 3
        s_lshl_b32 {s(sR)}, {s(sXC)}, 2
        s_add_u32 {s(sR)}, {s(sR)}, {s(sRB)}
        s_lshl_b32 {s(sN)}, {s(sR)}, 3
        s_add_u32 {s(sN)}, {s(sN)}, {s(sJ)}
        s_getreg_b32 {s(sANN)}, hwreg(HW_REG_XCC_ID, 0, 4)
        s_or_b32 {s(sANN)}, {s(sANN)}, 0x80
        s_mov_b32 {s(sL2E)}, {LOG2E}
        s_mov_b32 {s(sL2E+1)}, {LOG2E}
        s_mov_b32 {s(sONE)}, 0x3f803f80
        s_mov_b32 {s(sM8)}, 0xff00ff00
        s_mov_b32 {s(sM8+1)}, 0xff00ff00
        s_mov_b32 {s(sMD)}, 0x00f0000f
        s_mov_b32 {s(sMD+1)}, 0xf0000f00
        s_waitcnt lgkmcnt(0)""")
        for srd, src, size in ((SRD_X, 64, 2097152), (SRD_WA, 66, 1572864), (SRD_WOA, 68, 524288), (SRD_WB, 72, 1572864),
                               (SRD_PHI, 74, 16384), (SRD_WOB, 76, 524288), (SRD_OUT, 78, 2097152), (SRD_DBG, 80, 256), (SRD_WS, 82, WS_SIZE)):
            e(f"s_mov_b32 {s(srd)}, {s(src)}\ns_mov_b32 {s(srd+1)}, {s(src+1)}\ns_mov_b32 {s(srd+2)}, {size}\ns_mov_b32 {s(srd+3)}, 0x20000")
        self.ts("start")
        e(f"""
        s_lshl_b32 {s(sFL)}, {s(sN)}, 7
        s_lshl_b32 {s(sT0)}, {s(sW)}, 2
        s_add_u32 {s(sFL)}, {s(sFL)}, {s(sT0)}
        s_lshl_b32 {s(sOST)}, {s(sR)}, 16
        s_lshl_b32 {s(sT0)}, {s(sJ)}, 11
        s_add_u32 {s(sOST)}, {s(sOST)}, {s(sT0)}
        s_lshl_b32 {s(sT0)}, {s(sW)}, 9
        s_add_u32 {s(sOST)}, {s(sOST)}, {s(sT0)}
        s_max_u32 {s(sRH)}, {s(sR)}, 1""")
        e(f"""
        s_mul_i32 {s(sT0)}, {s(sW)}, {3*32768}
        s_lshl_b32 {s(sT1)}, {s(sN)}, 7
        s_add_u32 {s(sT0)}, {s(sT0)}, {s(sT1)}
        v_lshlrev_b32 v12, 11, {v(vL16)}
        v_mov_b32 v16, 0
        v_mov_b32 v17, 0
        v_mov_b32 v18, 0
        v_mov_b32 v19, 0
        s_mov_b64 exec, 7
        buffer_store_dwordx4 v[16:19], v12, {s(SRD_WS,4)}, {s(sT0)} offen sc1
        s_mov_b64 exec, -1""")

    def wdma_addr(self, dst, rowbytes, tmp):
        e = self.e
        self.lane(tmp)
        e(f"""
        v_lshrrev_b32 {v(dst)}, 3, {v(tmp)}
        s_lshl_b32 {s(sT0)}, {s(sW)}, 3
        v_add_u32 {v(dst)}, {s(sT0)}, {v(dst)}
        v_mul_u32_u24 {v(dst)}, {rowbytes}, {v(dst)}
        v_bfe_u32 {v(tmp+1)}, {v(tmp)}, 4, 1
        s_and_b32 {s(sT0)}, {s(sW)}, 1
        s_lshl_b32 {s(sT0)}, {s(sT0)}, 1
        v_or_b32 {v(tmp+1)}, {s(sT0)}, {v(tmp+1)}
        v_lshlrev_b32 {v(tmp+1)}, 1, {v(tmp+1)}
        v_and_b32 {v(tmp)}, 7, {v(tmp)}
        v_xor_b32 {v(tmp)}, {v(tmp)}, {v(tmp+1)}
        v_lshl_add_u32 {v(dst)}, {v(tmp)}, 4, {v(dst)}
        s_lshl_b32 {s(sT0)}, {s(sJ)}, 7
        v_add_u32 {v(dst)}, {s(sT0)}, {v(dst)}""")
    def tr_addr(self, dst, gstride, tmp, with_w):
        e = self.e
        self.lane(tmp)
        e(f"""
        v_lshrrev_b32 {v(dst)}, 4, {v(tmp)}
        v_mul_u32_u24 {v(dst)}, {gstride}, {v(dst)}
        v_bfe_u32 {v(tmp+1)}, {v(tmp)}, 2, 2
        v_lshl_add_u32 {v(dst)}, {v(tmp+1)}, 7, {v(dst)}
        v_and_b32 {v(tmp+1)}, 3, {v(tmp)}
        v_lshl_add_u32 {v(dst)}, {v(tmp+1)}, 3, {v(dst)}
        v_bfe_u32 {v(tmp+1)}, {v(tmp)}, 3, 2""")
        if with_w: e(f"v_xor_b32 {v(tmp+1)}, {s(sW)}, {v(tmp+1)}")
        e(f"""
        v_lshl_add_u32 {v(dst)}, {v(tmp+1)}, 5, {v(dst)}
        v_add_u32 {v(dst)}, {LDS_Y}, {v(dst)}""")
    def xrow_addr(self, dst, tmp):
        e = self.e
        self.lane(tmp)
        e(f"""
        v_and_b32 {v(dst)}, 15, {v(tmp)}
        v_lshlrev_b32 {v(dst)}, 11, {v(dst)}
        v_bfe_u32 {v(tmp+1)}, {v(tmp)}, 4, 1
        v_lshl_add_u32 {v(dst)}, {v(tmp+1)}, 5, {v(dst)}
        v_lshrrev_b32 {v(tmp+1)}, 5, {v(tmp)}
        v_lshl_add_u32 {v(dst)}, {v(tmp+1)}, 4, {v(dst)}
        s_lshl_b32 {s(sT0)}, {s(sR)}, 6
        s_and_b32 {s(sT1)}, {s(sW)}, 1
        s_lshl_b32 {s(sT1)}, {s(sT1)}, 5
        s_add_u32 {s(sT0)}, {s(sT0)}, {s(sT1)}
        s_lshr_b32 {s(sT1)}, {s(sW)}, 1
        s_add_u32 {s(sT0)}, {s(sT0)}, {s(sT1)}
        s_lshl_b32 {s(sT0)}, {s(sT0)}, 10
        s_lshl_b32 {s(sT1)}, {s(sJ)}, 7
        s_add_u32 {s(sT0)}, {s(sT0)}, {s(sT1)}
        v_add_u32 {v(dst)}, {s(sT0)}, {v(dst)}""")

    def wdma(self, srd, va, kk):
        slot = (kk // 2) % 3
        self.e(f"""
        s_add_u32 m0, {s(sT4)}, {LDS_Y + slot * 24576 + (kk & 1) * 12288}
        s_mov_b32 {s(sT1)}, {kk * 98304}""")
        for sec in range(3):
            self.e(f"buffer_load_dwordx4 {v(va)}, {s(srd,4)}, {s(sT1)} offen offset:{sec*1024} lds")
        return self.A.vm
    def wodma(self, srd, va):
        self.e(f"s_lshl_b32 {s(sT2)}, {s(sW)}, 10")
        for kk in range(16):
            self.e(f"""
            s_add_u32 m0, {s(sT2)}, {LDS_Y + kk * 4096}
            s_mov_b32 {s(sT1)}, {kk * 32768}
            buffer_load_dwordx4 {v(va)}, {s(srd,4)}, {s(sT1)} offen lds""")
        return self.A.vm

    def finish_stats(self, S, Q, t0):
        self.e(f"""
        v_mul_f32 {v(S)}, 0x3b000000, {v(S)}
        v_mul_f32 {v(Q)}, 0x3b000000, {v(Q)}
        v_fma_f32 {v(Q)}, -{v(S)}, {v(S)}, {v(Q)}
        v_max_f32 {v(Q)}, 0, {v(Q)}
        v_add_f32 {v(Q)}, 0x3727c5ac, {v(Q)}
        v_rsq_f32 {v(Q)}, {v(Q)}""")

    def gemm(self, typ, secs, ntile, xaddr, avail, staged=None, colsum=False, ring=RING, nring=8, hooks=None):
        A = self.A; hooks = hooks or {}
        frags = [(kk, t) for kk in range(16) for t in range(ntile)]
        rd = {}; wrd = {}
        done_av = set()
        def make_avail(kk):
            for k in sorted(avail):
                if k <= kk and k not in done_av:
                    done_av.add(k); avail[k]()
        def issue_x(n):
            kk, t = frags[n]
            if not staged: make_avail(kk)
            va, off = xaddr(t, kk)
            rd[n] = A.dsop(f"ds_read_b128 {v(ring + 4 * (n % nring), 4)}, {v(va)} offset:{off}")
        def issue_w(kk, sec):
            make_avail(kk)
            _, kind, base = wreg(typ, kk, sec)
            off = ((kk // 2) % 3) * 24576 + (kk & 1) * 12288 + sec * 1024
            for u in range(2):
                wrd[(kk, sec)] = A.dsop(f"ds_read_b64_tr_b16 {R(kind, base + 2*u, 2)}, {v(staged['va'])} offset:{off + u * 512}")
        if staged:
            for sec in range(3): issue_w(0, sec)
        for n in range(nring - 1): issue_x(n)
        for n, (kk, t) in enumerate(frags):
            if t == 0 and staged:
                A.wait(lg=wrd[(kk, 2)])
                if kk + 1 < 16: make_avail(kk + 1)
            if (kk, t) in hooks: hooks[(kk, t)]()
            A.wait(lg=rd[n])
            xf = v(ring + 4 * (n % nring), 4)
            for sec in secs:
                if sec == 0 and t == 4: continue
                acc = v((ACCQ, ACCK, ACCV)[sec] + 4 * t, 4)
                c = acc if kk else "0"
                wf = wreg(typ, kk, sec)[0]
                if sec == 2: self.mfma(acc, xf, wf, c)
                else: self.mfma(acc, wf, xf, c)
            if colsum and t < 3:
                acc = v(CS + 4 * t, 4); c = acc if kk else "0"
                wf = wreg(typ, kk, t)[0]
                if t == 2: self.mfma(acc, v(ONES, 4), wf, c)
                else: self.mfma(acc, wf, v(ONES, 4), c)
            if staged and kk + 1 < 16 and t < 3: issue_w(kk + 1, t)
            if n + nring - 1 < len(frags): issue_x(n + nring - 1)

    def set_ones(self):
        for r in range(4): self.e(f"v_mov_b32 {v(ONES + r)}, {s(sONE)}")

    def cs_addr(self, dst, typ, tmp):
        self.lane(tmp)
        self.e(f"""
        s_mul_i32 {s(sT0)}, {s(sW)}, 192
        s_add_u32 {s(sT0)}, {s(sT0)}, {T_CS + typ * 768}
        v_and_b32 {v(dst)}, 48, {v(tmp)}
        v_add_u32 {v(dst)}, {s(sT0)}, {v(dst)}
        v_and_b32 {v(dst+1)}, 15, {v(tmp)}
        v_lshl_add_u32 {v(dst+1)}, {v(dst+1)}, 2, {s(sT0)}""")
    def cs_save(self, typ, t):
        self.cs_addr(t, typ, t + 2)
        self.e(f"""
        ds_write_b128 {v(t)}, {v(CS,4)}
        ds_write_b128 {v(t)}, {v(CS+4,4)} offset:64
        ds_write_b32 {v(t+1)}, {v(CS+8)} offset:128""")
    def cs_load(self, typ, t):
        self.cs_addr(t, typ, t + 2)
        self.e(f"""
        ds_read_b128 {v(CS,4)}, {v(t)}
        ds_read_b128 {v(CS+4,4)}, {v(t)} offset:64""")
        return self.A.dsop(f"ds_read_b32 {v(CS+8)}, {v(t+1)} offset:128")

    def fix_T(self, acc, c, st, dst):
        for h in range(2):
            self.e(f"v_pk_fma_f32 {v(acc+2*h,2)}, {v(c+2*h,2)}, {v(st,2)}, {v(acc+2*h,2)} op_sel_hi:[1,0,1] neg_lo:[0,1,0] neg_hi:[0,1,0]")
        for h in range(2):
            self.e(f"v_pk_mul_f32 {v(acc+2*h,2)}, {v(acc+2*h,2)}, {v(st,2)} op_sel:[0,1] op_sel_hi:[1,1]")
        for d in (dst if isinstance(dst, list) else [dst]):
            for h in range(2): self.e(f"v_cvt_pk_bf16_f32 {v(d+h)}, {v(acc+2*h)}, {v(acc+2*h+1)}")
    def fix_N(self, acc, m4, a4, dst):
        for h in range(2):
            self.e(f"v_pk_fma_f32 {v(acc+2*h,2)}, {v(m4+2*h,2)}, {v(CS+8,2)}, {v(acc+2*h,2)} op_sel_hi:[1,0,1] neg_lo:[0,1,0] neg_hi:[0,1,0]")
        for h in range(2):
            self.e(f"v_pk_mul_f32 {v(acc+2*h,2)}, {v(acc+2*h,2)}, {v(a4+2*h,2)}")
        for d in (dst if isinstance(dst, list) else [dst]):
            for h in range(2): self.e(f"v_cvt_pk_bf16_f32 {v(d+h)}, {v(acc+2*h)}, {v(acc+2*h+1)}")
    def lane_stats(self, ntile, ta):
        self.lane(ta + 1)
        self.e(f"""
        v_and_b32 {v(ta)}, 15, {v(ta+1)}
        v_lshlrev_b32 {v(ta)}, 2, {v(ta)}
        v_add_u32 {v(ta)}, {T_M}, {v(ta)}
        v_and_b32 {v(ta+1)}, 48, {v(ta+1)}
        v_add_u32 {v(ta+1)}, {T_M}, {v(ta+1)}""")
        for t in range(ntile):
            q = self.A.dsop(f"ds_read2_b32 {v(12+2*t,2)}, {v(ta)} offset0:{16*t} offset1:{128+16*t}")
        return q
    def reg_stats(self, t, dst, ta):
        self.e(f"ds_read_b128 {v(dst,4)}, {v(ta)} offset:{64*t}")
        return self.A.dsop(f"ds_read_b128 {v(dst+4,4)}, {v(ta)} offset:{512+64*t}")

    def xmax4(self, M, T, scale=None):
        e = self.e
        e(f"""
        v_permlane32_swap_b32 {v(M)}, {v(M+1)}
        v_permlane32_swap_b32 {v(M+2)}, {v(M+3)}
        v_max_f32 {v(M)}, {v(M)}, {v(M+1)}
        v_max_f32 {v(M+2)}, {v(M+2)}, {v(M+3)}
        v_permlane16_swap_b32 {v(M)}, {v(M+2)}
        v_max_f32 {v(M)}, {v(M)}, {v(M+2)}""")
        if scale: e(f"v_mul_f32 {v(M)}, {scale}, {v(M)}")
        e(f"""
        v_mov_b32 {v(M+2)}, {v(M)}
        v_permlane16_swap_b32 {v(M)}, {v(M+2)}
        v_mov_b32 {v(M+1)}, {v(M)}
        v_mov_b32 {v(M+3)}, {v(M+2)}
        v_permlane32_swap_b32 {v(M)}, {v(M+1)}
        v_permlane32_swap_b32 {v(M+2)}, {v(M+3)}""")

    def publish_o(self, L, OP, t0):
        e = self.e
        for p in range(2):
            e(f"v_permlane16_swap_b32 {v(OP+4*p)}, {v(OP+4*p+2)}\nv_permlane16_swap_b32 {v(OP+4*p+1)}, {v(OP+4*p+3)}")
        self.store2([f"buffer_store_dwordx4 {v(OP,4)}, {v(t0)}, {s(SRD_WS,4)}, {s(sT2)} offen",
                     f"buffer_store_dwordx4 {v(OP+4,4)}, {v(t0)}, {s(SRD_WS,4)}, {s(sT3)} offen"])
        self.flag(H_O + L, False, t0 + 1)
    def o_addr(self, L, t0):
        self.lane(t0 + 1)
        self.e(f"""
        v_and_b32 {v(t0)}, 0xf0, {v(vL16)}
        v_bfe_u32 {v(t0+2)}, {v(t0+1)}, 4, 1
        v_lshl_add_u32 {v(t0)}, {v(t0+2)}, 14, {v(t0)}
        v_lshrrev_b32 {v(t0+2)}, 5, {v(t0+1)}
        v_lshl_add_u32 {v(t0)}, {v(t0+2)}, 8, {v(t0)}
        s_add_u32 {s(sT2)}, {s(sOST)}, {WS_O + L * 32 * 65536}
        s_add_u32 {s(sT3)}, {s(sT2)}, 32768""")

    def attn_A(self, L):
        A = self.A; e = self.e
        VP = 28
        vdst = {0: VP + 2, 1: VP + 4, 2: VP + 8, 3: VP + 10, 4: [VP, VP + 6]}
        TA = 22
        r01 = [self.reg_stats(0, 40, TA + 1), self.reg_stats(1, 48, TA + 1)]
        A.wait(lg=self.q_ls)
        qs = 0x3eb8aa3b
        for t in range(4):
            e(f"v_mul_f32 {v(59)}, {qs}, {v(13+2*t)}\nv_mov_b32 {v(58)}, {v(12+2*t)}")
            self.fix_T(ACCQ + 4 * t, CS, 58, ACCQ + 4 * t)
        A.wait(lg=r01[1])
        self.fix_N(ACCV, 40, 44, vdst[0]); self.fix_N(ACCV + 4, 48, 52, vdst[1])
        r23 = [self.reg_stats(2, 40, TA + 1), self.reg_stats(3, 48, TA + 1)]
        r4 = self.reg_stats(4, ACCV, TA + 1)
        for t in range(5): self.fix_T(ACCK + 4 * t, CS + 4, 12 + 2 * t, ACCK + 4 * t)
        A.wait(lg=r4)
        self.fix_N(ACCV + 8, 40, 44, vdst[2]); self.fix_N(ACCV + 12, 48, 52, vdst[3])
        e(f"v_add_u32 {v(58)}, {T_MASK}, {v(vL16)}")
        for m in range(4): qm = A.dsop(f"ds_read_b128 {v(40+4*m,4)}, {v(58)} offset:{1024*m}")
        self.fix_N(ACCV + 16, ACCV, ACCV + 4, vdst[4])
        self.set_ones()
        A.wait(lg=qm)
        S = 96
        prev = {0: 4, 1: 0, 2: 4, 3: 2}; pm = {0: 48, 1: 44, 2: 52, 3: 44}
        for t in range(4):
            self.mfma(v(S + 8 * t, 4), v(ACCK + 4 * prev[t], 2), v(ACCQ + 4 * t, 2), v(pm[t], 4), k16=True)
            self.mfma(v(S + 8 * t + 4, 4), v(ACCK + 4 * t, 2), v(ACCQ + 4 * t, 2), v(40, 4), k16=True)
        self.o_addr(L, 16)
        for t in range(4):
            b = S + 8 * t
            e(f"""v_max3_f32 {v(12+t)}, {v(b)}, {v(b+1)}, {v(b+2)}
            v_max3_f32 {v(12+t)}, {v(12+t)}, {v(b+3)}, {v(b+4)}
            v_max3_f32 {v(12+t)}, {v(12+t)}, {v(b+5)}, {v(b+6)}
            v_max_f32 {v(12+t)}, {v(12+t)}, {v(b+7)}""")
        self.xmax4(12, None)
        for t in range(4):
            b = S + 8 * t; hi = t & 1
            for h in range(4):
                e(f"v_pk_add_f32 {v(b+2*h,2)}, {v(b+2*h,2)}, {v(12+(t&2),2)} op_sel:[0,{hi}] op_sel_hi:[1,{hi}] neg_lo:[0,1] neg_hi:[0,1]")
            for r in range(8): e(f"v_exp_f32 {v(b+r)}, {v(b+r)}")
            for h in range(4): e(f"v_cvt_pk_bf16_f32 {v(b+h)}, {v(b+2*h)}, {v(b+2*h+1)}")
            vo = {0: VP, 1: VP + 2, 2: VP + 6, 3: VP + 8}[t]
            self.mfma(v(40 + 4 * t, 4), v(ONES, 4), v(b, 4), "0")
            self.mfma(v(b + 4, 4), v(vo, 4), v(b, 4), "0")
        OP = 60
        for t in range(4):
            b = S + 8 * t + 4
            e(f"v_rcp_f32 {v(40+4*t)}, {v(40+4*t)}")
            for h in range(2): e(f"v_pk_mul_f32 {v(b+2*h,2)}, {v(b+2*h,2)}, {v(40+4*t,2)} op_sel_hi:[1,0]")
            for h in range(2): e(f"v_cvt_pk_bf16_f32 {v(OP+2*t+h)}, {v(b+2*h)}, {v(b+2*h+1)}")
        self.ts(f"attn{L}")
        self.publish_o(L, OP, 16)

    def make_masks(self):
        e = self.e
        self.lane(12)
        e(f"""
        v_and_b32 v13, 15, v12
        v_lshrrev_b32 v14, 2, v12
        v_and_b32 v14, 12, v14
        v_sub_u32 v15, v14, v13
        s_cmp_eq_u32 {s(sW)}, 0
        s_cselect_b32 {s(sT0)}, -7, 9
        s_cselect_b32 {s(sT1)}, 0, 64
        s_cmp_eq_u32 {s(sW)}, 2
        s_cselect_b32 {s(sT0)}, 1, {s(sT0)}
        s_cselect_b32 {s(sT2)}, 7, 64
        s_cmp_ge_u32 {s(sW)}, 2
        s_cselect_b32 {s(sT3)}, 1, 0
        s_cmp_eq_u32 {s(sR)}, 0
        s_cselect_b32 {s(sT3)}, {s(sT3)}, 0
        s_cmp_eq_u32 {s(sT3)}, 1
        s_cselect_b32 {s(sT0)}, 64, {s(sT0)}
        v_mov_b32 v21, 0xf149f2ca""")
        for r in range(4):
            e(f"""
            v_add_u32 v20, {r}, v15
            v_cmp_le_i32 vcc, {s(sT0)}, v20
            v_cndmask_b32 {v(16+r)}, v21, 0, vcc
            v_cmp_ge_i32 vcc, {s(sT1)}, v20
            v_cndmask_b32 {v(16+r)}, v21, {v(16+r)}, vcc
            v_add_u32 v20, {r}, v14
            v_cmp_ge_i32 vcc, {s(sT2)}, v20
            v_cndmask_b32 {v(16+r)}, v21, {v(16+r)}, vcc""")
        e(f"""
        s_lshl_b32 {s(sT0)}, {s(sW)}, 10
        s_add_u32 {s(sT0)}, {s(sT0)}, {T_MASK}
        v_add_u32 v20, {s(sT0)}, {v(vL16)}
        ds_write_b128 v20, v[16:19]""")

    def softmax_pm(self, P, E, PH, SEL):
        e = self.e
        for t in range(4):
            p = P + 4 * t
            e(f"""v_max3_f32 {v(12+t)}, {v(p)}, {v(p+1)}, {v(p+2)}
            v_max3_f32 {v(16+t)}, -{v(p)}, -{v(p+1)}, -{v(p+2)}
            v_max_f32 {v(12+t)}, {v(12+t)}, {v(p+3)}
            v_max_f32_e64 {v(16+t)}, {v(16+t)}, -{v(p+3)}""")
        self.xmax4(12, None, scale=s(sL2E)); self.xmax4(16, None, scale=s(sL2E))
        for t in range(4):
            p = P + 4 * t; b = E + 8 * t; hi = t & 1
            for h in range(2):
                e(f"v_pk_fma_f32 {v(b+2*h,2)}, {v(p+2*h,2)}, {s(sL2E,2)}, {v(12+(t&2),2)} op_sel:[0,0,{hi}] op_sel_hi:[1,1,{hi}] neg_lo:[0,0,1] neg_hi:[0,0,1]")
                e(f"v_pk_fma_f32 {v(b+4+2*h,2)}, {v(p+2*h,2)}, {s(sL2E,2)}, {v(16+(t&2),2)} op_sel:[0,0,{hi}] op_sel_hi:[1,1,{hi}] neg_lo:[0,1,1] neg_hi:[0,1,1]")
            for r in range(8): e(f"v_exp_f32 {v(b+r)}, {v(b+r)}")
            for h in range(4): e(f"v_cvt_pk_bf16_f32 {v(PH+4*t+h)}, {v(b+2*h)}, {v(b+2*h+1)}")
            self.mfma(v(p, 4), v(SEL, 4), v(PH + 4 * t, 4), "0")
        for t in range(4):
            p = P + 4 * t; b = E + 8 * t
            e(f"v_rcp_f32 {v(p)}, {v(p)}\nv_rcp_f32 {v(p+1)}, {v(p+1)}")
            for h in range(2): e(f"v_pk_mul_f32 {v(b+2*h,2)}, {v(b+2*h,2)}, {v(p,2)} op_sel_hi:[1,0]")
            for h in range(2): e(f"v_pk_mul_f32 {v(b+4+2*h,2)}, {v(b+4+2*h,2)}, {v(p,2)} op_sel:[0,1] op_sel_hi:[1,1]")
            for h in range(4): e(f"v_cvt_pk_bf16_f32 {v(PH+4*t+h)}, {v(b+2*h)}, {v(b+2*h+1)}")

    def b_consts(self, SEL, EYE):
        e = self.e
        self.lane(58)
        e(f"""
        v_and_b32 v59, 3, v58
        v_mov_b32 {v(SEL+1)}, {s(sONE)}
        v_cmp_eq_u32 vcc, 0, v59
        v_cndmask_b32 {v(SEL)}, 0, {v(SEL+1)}, vcc
        v_cmp_eq_u32 vcc, 1, v59
        v_cndmask_b32 {v(SEL+2)}, 0, {v(SEL+1)}, vcc
        v_mov_b32 {v(SEL+1)}, {v(SEL)}
        v_mov_b32 {v(SEL+3)}, {v(SEL+2)}
        v_and_b32 v59, 1, v58
        v_lshlrev_b32 v59, 4, v59
        v_mov_b32 {v(EYE)}, 0x3f80
        v_lshlrev_b32 v59, v59, {v(EYE)}
        v_bfe_u32 v58, v58, 1, 1
        v_cndmask_b32 v59, 0, v59, {s(sMD,2)}
        v_cmp_eq_u32 vcc, 0, v58
        v_cndmask_b32 {v(EYE)}, 0, v59, vcc
        v_cndmask_b32 {v(EYE+1)}, v59, 0, vcc""")

    def kside_B(self, Lb):
        A = self.A; e = self.e
        VP = 28; TA = 22; SEL = 52; EYE = 56; PH = 36; E = 76; P = 60
        r01 = [self.reg_stats(0, 36, TA + 1), self.reg_stats(1, 44, TA + 1)]
        A.wait(lg=self.q_ls)
        for t in range(4): self.fix_T(ACCK + 4 * t, CS + 4, 12 + 2 * t, ACCK + 4 * t)
        for t in range(4): self.mfma(v(P + 4 * t, 4), v(vPHI, 2), v(ACCK + 4 * t, 2), "0", k16=True)
        A.wait(lg=r01[1])
        self.fix_N(ACCV, 36, 40, VP); self.fix_N(ACCV + 4, 44, 48, VP + 2)
        r23 = [self.reg_stats(2, 36, TA + 1), self.reg_stats(3, 44, TA + 1)]
        self.b_consts(SEL, EYE)
        self.set_ones()
        A.wait(lg=r23[1])
        self.fix_N(ACCV + 8, 36, 40, VP + 4); self.fix_N(ACCV + 12, 44, 48, VP + 6)
        self.softmax_pm(P, E, PH, SEL)
        for t in range(4):
            self.mfma(v(E + 8 * t, 4), v(PH + 4 * t, 2), v(EYE, 2), "0", k16=True)
            self.mfma(v(E + 8 * t + 4, 4), v(PH + 4 * t + 2, 2), v(EYE, 2), "0", k16=True)
        e(f"""
        s_lshl_b32 {s(sT0)}, {s(sXC)}, 3
        s_add_u32 {s(sT0)}, {s(sT0)}, {s(sJ)}
        s_lshl_b32 {s(sT0)}, {s(sT0)}, 2
        s_add_u32 {s(sT0)}, {s(sT0)}, {s(sW)}
        s_lshl_b32 {s(sT0)}, {s(sT0)}, 2
        s_add_u32 {s(sT0)}, {s(sT0)}, {s(sRB)}
        s_mul_i32 {s(sT2)}, {s(sT0)}, 3072
        s_add_u32 {s(sT2)}, {s(sT2)}, {WS_KV1 + Lb * 0x300000}""")
        for t in range(4):
            for sg in range(2):
                d = 60 + 8 * (t >> 1) + 4 * sg + 2 * (t & 1); b = E + 8 * t + 4 * sg
                for h in range(2): e(f"v_cvt_pk_bf16_f32 {v(d+h)}, {v(b+2*h)}, {v(b+2*h+1)}")
        KV = 108
        for p in range(2):
            for sg in range(2):
                x = v(60 + 8 * p + 4 * sg, 4)
                d = v(KV + 4 * sg, 4); self.mfma(d, x, v(VP + 4 * p, 4), d if p else "0")
                d = v(KV + 8 + 4 * sg, 4); self.mfma(d, x, v(ONES, 4), d if p else "0")
        for r in range(4): e(f"v_cndmask_b32 {v(KV+8+r)}, {v(KV+8+r)}, {v(KV+12+r)}, {s(sM8,2)}")
        self.ts(f"kside{Lb}")
        self.store2([f"buffer_store_dwordx4 {v(KV+4*q,4)}, {v(vL16)}, {s(SRD_WS,4)}, {s(sT2)} offen offset:{1024*q}" for q in range(3)])
        self.flag(H_K1 + Lb, False, 58)

    def reduce_B(self, Lb):
        A = self.A; e = self.e; eu = self.eu
        skip = A.label()
        e(f"s_cmp_lg_u32 {s(sW)}, {s(sRB)}\ns_cbranch_scc1 {skip}")
        self.lane(58)
        e(f"""
        v_and_b32 v59, 3, v58
        v_lshlrev_b32 v59, 10, v59
        s_lshl_b32 {s(sT0)}, {s(sXC)}, 12
        s_lshl_b32 {s(sT1)}, {s(sJ)}, 7
        s_add_u32 {s(sT0)}, {s(sT0)}, {s(sT1)}
        s_lshl_b32 {s(sT1)}, {s(sW)}, 2
        s_add_u32 {s(sT0)}, {s(sT0)}, {s(sT1)}
        s_add_u32 {s(sT0)}, {s(sT0)}, {WS_FLAG + (H_K1 + Lb) * 32768}""")
        self.poll(59, s(sT0), 76, tracked=False)
        e(f"""
        s_lshl_b32 {s(sT0)}, {s(sXC)}, 3
        s_add_u32 {s(sT0)}, {s(sT0)}, {s(sJ)}
        s_lshl_b32 {s(sT0)}, {s(sT0)}, 2
        s_add_u32 {s(sT0)}, {s(sT0)}, {s(sW)}
        s_mul_i32 {s(sT2)}, {s(sT0)}, 12288
        s_add_u32 {s(sT2)}, {s(sT2)}, {WS_KV1 + Lb * 0x300000}""")
        for rb in range(4):
            for q in range(3):
                eu(f"buffer_load_dwordx4 {v(76+12*rb+4*q,4)}, {v(vL16)}, {s(SRD_WS,4)}, {s(sT2)} offen offset:{1024*q} sc1")
            e(f"s_add_u32 {s(sT2)}, {s(sT2)}, 3072")
        e(f"""
        s_lshl_b32 {s(sT0)}, {s(sJ)}, 2
        s_add_u32 {s(sT0)}, {s(sT0)}, {s(sW)}
        s_lshl_b32 {s(sT0)}, {s(sT0)}, 3
        s_add_u32 {s(sT0)}, {s(sT0)}, {s(sXC)}
        s_lshl_b32 {s(sT2)}, {s(sT0)}, 10
        s_add_u32 {s(sT2)}, {s(sT2)}, {WS_KV2 + Lb * 0x40000}
        s_lshl_b32 {s(sT3)}, {s(sT0)}, 7
        s_add_u32 {s(sT3)}, {s(sT3)}, {WS_Z2 + Lb * 0x8000}
        v_bfe_u32 v59, v58, 3, 1
        v_lshlrev_b32 v59, 6, v59
        v_and_b32 v58, 48, v58
        v_add_u32 v58, v58, v59
        s_waitcnt vmcnt(6)""")
        for h in range(6): e(f"v_pk_add_f32 {v(76+2*h,2)}, {v(76+2*h,2)}, {v(88+2*h,2)}")
        e("s_waitcnt vmcnt(0)")
        for h in range(6): e(f"v_pk_add_f32 {v(100+2*h,2)}, {v(100+2*h,2)}, {v(112+2*h,2)}")
        for h in range(6): e(f"v_pk_add_f32 {v(76+2*h,2)}, {v(76+2*h,2)}, {v(100+2*h,2)}")
        for h in range(4): e(f"v_cvt_pk_bf16_f32 {v(76+h)}, {v(76+2*h)}, {v(77+2*h)}")
        eu(f"buffer_store_dwordx4 {v(76,4)}, {v(vL16)}, {s(SRD_WS,4)}, {s(sT2)} offen sc1")
        e("s_mov_b32 exec_lo, 0x01010101\ns_mov_b32 exec_hi, 0x01010101")
        eu(f"buffer_store_dwordx4 {v(84,4)}, v58, {s(SRD_WS,4)}, {s(sT3)} offen sc1")
        e("s_mov_b64 exec, -1")
        self.flag(H_K2 + Lb, True, 58, tracked=False)
        A.place(skip)

    def qside_B(self, L, Lb):
        A = self.A; e = self.e
        SEL = 52; PH = 36; E = 76; P = 60
        self.cs_load(1, 28)
        q = self.lane_stats(4, 22); A.wait(lg=q)
        for t in range(4): self.fix_T(ACCQ + 4 * t, CS, 12 + 2 * t, 28 + 2 * t)
        for t in range(4): self.mfma(v(P + 4 * t, 4), v(vPHI, 2), v(28 + 2 * t, 2), "0", k16=True)
        self.softmax_pm(P, E, PH, SEL)
        self.ts(f"phiq{Lb}")
        self.lane(58)
        e(f"""
        v_and_b32 v59, 7, v58
        v_lshlrev_b32 v20, 12, v59
        s_lshl_b32 {s(sT0)}, {s(sW)}, 10
        s_lshl_b32 {s(sT1)}, {s(sJ)}, 7
        s_add_u32 {s(sT0)}, {s(sT0)}, {s(sT1)}
        s_lshl_b32 {s(sT1)}, {s(sW)}, 2
        s_add_u32 {s(sT0)}, {s(sT0)}, {s(sT1)}
        s_add_u32 {s(sT0)}, {s(sT0)}, {WS_FLAG + (H_K2 + Lb) * 32768}
        v_lshlrev_b32 v59, 7, v59
        v_bfe_u32 v21, v58, 3, 1
        v_lshl_add_u32 v59, v21, 6, v59
        v_and_b32 v58, 48, v58
        v_add_u32 v58, v58, v59
        s_lshl_b32 {s(sT4)}, {s(sJ)}, 2
        s_add_u32 {s(sT4)}, {s(sT4)}, {s(sW)}
        s_lshl_b32 {s(sT5)}, {s(sT4)}, 10
        s_add_u32 {s(sT5)}, {s(sT5)}, {WS_Z2 + Lb * 0x8000}
        s_lshl_b32 {s(sT4)}, {s(sT4)}, 13
        s_add_u32 {s(sT4)}, {s(sT4)}, {WS_KV2 + Lb * 0x40000}""")
        self.o_addr(L, 16)
        self.poll(20, s(sT0), 21)
        self.ts(f"kv2poll{Lb}")
        qz = A.vmop(f"buffer_load_dwordx4 v[108:111], v58, {s(SRD_WS,4)}, {s(sT5)} offen sc1")
        qk = []
        for x in range(8):
            if x == 4: e(f"s_add_u32 {s(sT4)}, {s(sT4)}, 4096")
            qk.append(A.vmop(f"buffer_load_dwordx4 {v(76+4*x,4)}, {v(vL16)}, {s(SRD_WS,4)}, {s(sT4)} offen offset:{1024*(x&3)} sc1"))
        A.wait(vm=qz)
        for m in ("quad_perm:[1,0,3,2]", "quad_perm:[2,3,0,1]", "row_half_mirror"):
            for r in range(4): e(f"v_add_f32_dpp {v(108+r)}, {v(108+r)}, {v(108+r)} {m} row_mask:0xf bank_mask:0xf")
        e(f"""
        v_cvt_pk_bf16_f32 v108, v108, v109
        v_cvt_pk_bf16_f32 v109, v110, v111
        v_mov_b32 v110, v108
        v_mov_b32 v111, v109
        v_mov_b32_dpp v110, v108 row_ror:8 row_mask:0xf bank_mask:0x3
        v_mov_b32_dpp v111, v109 row_ror:8 row_mask:0xf bank_mask:0x3
        v_mov_b32_dpp v108, v108 row_ror:8 row_mask:0xf bank_mask:0xc
        v_mov_b32_dpp v109, v109 row_ror:8 row_mask:0xf bank_mask:0xc""")
        for t in range(4): self.mfma(v(112 + 4 * t, 4), v(108, 4), v(PH + 4 * t, 4), "0")
        for x in range(8):
            A.wait(vm=qk[x])
            for t in range(4):
                d = v(60 + 4 * t, 4); self.mfma(d, v(76 + 4 * x, 4), v(PH + 4 * t, 4), d if x else "0")
            if x == 1:
                for t in range(4): e(f"v_add_f32 {v(112+4*t)}, 0x358637bd, {v(112+4*t)}")
            if x == 2:
                for t in range(4): e(f"v_rcp_f32 {v(112+4*t)}, {v(112+4*t)}")
        OP = 28
        for t in range(4):
            b = 60 + 4 * t
            for h in range(2): e(f"v_pk_mul_f32 {v(b+2*h,2)}, {v(b+2*h,2)}, {v(112+4*t,2)} op_sel_hi:[1,0]")
            for h in range(2): e(f"v_cvt_pk_bf16_f32 {v(OP+2*t+h)}, {v(b+2*h)}, {v(b+2*h+1)}")
        self.ts(f"o{L}")
        self.publish_o(L, OP, 16)

    def outproj(self, L):
        A = self.A; e = self.e
        AC = 12; OF = 60; TR = 124
        e("s_barrier")
        self.tr_addr(TR, 1024, 58, False)
        for c in range(1, 4): e(f"v_xor_b32 {v(TR+c)}, {32*c}, {v(TR)}")
        fr = [(kk, c) for kk in range(16) for c in range(4)]
        rd = {}
        def issue(n):
            kk, c = fr[n]
            for u in range(2):
                rd[n] = A.dsop(f"ds_read_b64_tr_b16 {v(RING+4*(n%8)+2*u,2)}, {v(TR+c)} offset:{kk*4096+u*512}")
        for n in range(7): issue(n)
        for p in range(2):
            b = vXO + 4 * p
            e(f"v_permlane16_swap_b32 {v(b)}, {v(b+2)}\nv_permlane16_swap_b32 {v(b+1)}, {v(b+3)}")
        for c in range(4):
            for h in range(2):
                e(f"v_lshlrev_b32 {v(AC+4*c+2*h)}, 16, {v(vXO+2*c+h)}\nv_and_b32 {v(AC+4*c+2*h+1)}, 0xffff0000, {v(vXO+2*c+h)}")
        self.lane(OF)
        e(f"""
        v_bfe_u32 {v(OF+1)}, {v(OF)}, 2, 3
        v_and_b32 {v(OF)}, 3, {v(OF)}
        v_lshlrev_b32 {v(OF)}, 2, {v(OF)}
        v_lshl_add_u32 {v(OF)}, {v(OF+1)}, 7, {v(OF)}
        s_lshl_b32 {s(sT0)}, {s(sR)}, 10
        s_add_u32 {s(sT0)}, {s(sT0)}, {WS_FLAG + (H_O + L) * 32768}
        s_lshl_b32 {s(sT2)}, {s(sR)}, 16
        s_lshl_b32 {s(sT1)}, {s(sW)}, 14
        s_add_u32 {s(sT2)}, {s(sT2)}, {s(sT1)}
        s_add_u32 {s(sT2)}, {s(sT2)}, {WS_O + L * 32 * 65536}""")
        self.poll(OF, s(sT0), OF + 1)
        self.ts(f"opoll{L}")
        ol = []
        for kk in range(16):
            if kk and kk % 4 == 0: e(f"s_add_u32 {s(sT2)}, {s(sT2)}, 4096")
            ol.append(A.vmop(f"buffer_load_dwordx4 {v(OF+4*kk,4)}, {v(vL16)}, {s(SRD_WS,4)}, {s(sT2)} offen offset:{1024*(kk&3)} sc1"))
        for n, (kk, c) in enumerate(fr):
            A.wait(vm=ol[kk] if c == 0 else None, lg=rd[n])
            d = v(AC + 4 * c, 4)
            self.mfma(d, v(RING + 4 * (n % 8), 4), v(OF + 4 * kk, 4), d)
            if n + 7 < 64: issue(n + 7)
        T = 28
        if L < 3:
            self.lane(T + 1)
            e(f"""
            v_and_b32 {v(T)}, 0xf0, {v(vL16)}
            v_bfe_u32 {v(T+2)}, {v(T+1)}, 4, 1
            v_lshl_add_u32 {v(T)}, {v(T+2)}, 9, {v(T)}
            v_lshrrev_b32 {v(T+2)}, 5, {v(T+1)}
            v_lshl_add_u32 {v(T)}, {v(T+2)}, 8, {v(T)}
            s_lshl_b32 {s(sT2)}, {s(sR)}, 16
            s_lshl_b32 {s(sT1)}, {s(sJ)}, 13
            s_add_u32 {s(sT2)}, {s(sT2)}, {s(sT1)}
            s_lshl_b32 {s(sT1)}, {s(sW)}, 10
            s_add_u32 {s(sT2)}, {s(sT2)}, {s(sT1)}
            s_add_u32 {s(sT2)}, {s(sT2)}, {WS_X + L * 32 * 65536}
            s_add_u32 {s(sT3)}, {s(sT2)}, 4096""")
        else:
            self.xrow_addr(T, T + 1)
        for c in range(4):
            for h in range(2): e(f"v_cvt_pk_bf16_f32 {v(vXO+2*c+h)}, {v(AC+4*c+2*h)}, {v(AC+4*c+2*h+1)}")
        for p in range(2):
            b = vXO + 4 * p
            e(f"v_permlane16_swap_b32 {v(b)}, {v(b+2)}\nv_permlane16_swap_b32 {v(b+1)}, {v(b+3)}")
        self.ts(f"oproj{L}")
        if L == 3:
            e(f"buffer_store_dwordx4 {v(vXO,4)}, {v(T)}, {s(SRD_OUT,4)}, 0 offen")
            e(f"buffer_store_dwordx4 {v(vXO+4,4)}, {v(T)}, {s(SRD_OUT,4)}, 0 offen offset:64")
            return
        self.store2([f"buffer_store_dwordx4 {v(vXO,4)}, {v(T)}, {s(SRD_WS,4)}, {s(sT2)} offen",
                     f"buffer_store_dwordx4 {v(vXO+4,4)}, {v(T)}, {s(SRD_WS,4)}, {s(sT3)} offen"])
        S, Q = 32, 33
        e(f"v_mov_b32 {v(S)}, 0\nv_mov_b32 {v(Q)}, 0")
        for r in range(8):
            e(f"v_dot2_f32_bf16 {v(S)}, {v(vXO+r)}, {s(sONE)}, {v(S)}\nv_dot2_f32_bf16 {v(Q)}, {v(vXO+r)}, {v(vXO+r)}, {v(Q)}")
        e(f"""
        v_and_b32 {v(T+3)}, 15, {v(T+1)}
        v_lshlrev_b32 {v(T+3)}, 2, {v(T+3)}
        v_lshl_add_u32 {v(T+3)}, {v(T+2)}, 6, {v(T+3)}
        s_lshl_b32 {s(sT2)}, {s(sR)}, 2
        s_add_u32 {s(sT2)}, {s(sT2)}, {s(sW)}
        s_lshl_b32 {s(sT2)}, {s(sT2)}, 3
        s_add_u32 {s(sT2)}, {s(sT2)}, {s(sJ)}
        s_lshl_b32 {s(sT2)}, {s(sT2)}, 7
        s_add_u32 {s(sT2)}, {s(sT2)}, {WS_ST + L * 32 * 4096}
        v_permlane32_swap_b32 {v(S)}, {v(Q)}
        v_add_f32 {v(S)}, {v(S)}, {v(Q)}
        v_mov_b32 {v(Q)}, {v(S)}
        v_permlane16_swap_b32 {v(S)}, {v(Q)}
        v_add_f32 {v(S)}, {v(S)}, {v(Q)}""")
        self.store2([f"buffer_store_dword {v(S)}, {v(T+3)}, {s(SRD_WS,4)}, {s(sT2)} offen"])
        if L == 1:
            skip = A.label()
            e(f"""
            s_bitcmp1_b32 {s(sW)}, 0
            s_cbranch_scc0 {skip}
            s_add_u32 {s(sT0)}, {s(sR)}, 1
            s_lshl_b32 {s(sT2)}, {s(sT0)}, 14
            s_lshl_b32 {s(sT1)}, {s(sJ)}, 11
            s_add_u32 {s(sT2)}, {s(sT2)}, {s(sT1)}
            s_lshl_b32 {s(sT1)}, {s(sW)}, 6
            s_and_b32 {s(sT1)}, {s(sT1)}, 128
            s_add_u32 {s(sT2)}, {s(sT2)}, {s(sT1)}
            s_add_u32 {s(sT2)}, {s(sT2)}, {WS_H - 128}
            s_lshl_b32 {s(sT3)}, {s(sT0)}, 10
            s_lshl_b32 {s(sT0)}, {s(sJ)}, 7
            s_add_u32 {s(sT3)}, {s(sT3)}, {s(sT0)}
            s_lshr_b32 {s(sT1)}, {s(sT1)}, 2
            s_add_u32 {s(sT3)}, {s(sT3)}, {s(sT1)}
            s_add_u32 {s(sT3)}, {s(sT3)}, {WS_HS - 32}
            s_mov_b64 exec, {s(sM8,2)}""")
            self.eu(f"buffer_store_dwordx4 {v(vXO,4)}, {v(T)}, {s(SRD_WS,4)}, {s(sT2)} offen sc1")
            self.eu(f"buffer_store_dwordx4 {v(vXO+4,4)}, {v(T)}, {s(SRD_WS,4)}, {s(sT2)} offen offset:1024 sc1")
            self.eu(f"buffer_store_dword {v(S)}, {v(T+3)}, {s(SRD_WS,4)}, {s(sT3)} offen sc1")
            e("s_mov_b64 exec, -1")
            A.place(skip)
        self.ts(f"preflag{L}")
        self.flag(H_X + L, False, 34)
        self.ts(f"xflag{L}")
        if L == 1:
            e(f"""
            s_add_u32 {s(sT0)}, {s(sFL)}, {WS_FLAG + H_HALO * 32768}
            s_mov_b64 exec, 1
            buffer_store_dword v34, v35, {s(SRD_WS,4)}, {s(sT0)} offen sc1
            s_mov_b64 exec, -1""")

    def layer0(self):
        A = self.A; e = self.e
        self.lane(12)
        e(f"""
        v_and_b32 v13, 15, v12
        v_lshlrev_b32 v13, 1, v13
        v_and_b32 v12, 48, v12
        v_lshl_add_u32 v13, v12, 3, v13
        s_lshl_b32 {s(sT0)}, {s(sJ)}, 2
        s_add_u32 {s(sT0)}, {s(sT0)}, {s(sW)}
        s_lshl_b32 {s(sT0)}, {s(sT0)}, 9""")
        for q in range(4): e(f"buffer_load_ushort {v(76+q)}, v13, {s(SRD_PHI,4)}, {s(sT0)} offen offset:{32*q}")
        self.lane(12)
        e(f"""
        v_lshrrev_b32 v13, 3, v12
        v_and_b32 v14, 7, v12
        v_lshrrev_b32 v15, 1, v13
        v_xor_b32 v14, v14, v15
        v_lshlrev_b32 v14, 4, v14
        v_lshl_add_u32 v16, v13, 11, v14
        s_lshl_b32 {s(sT0)}, {s(sR)}, 6
        s_and_b32 {s(sT1)}, {s(sW)}, 1
        s_lshl_b32 {s(sT2)}, {s(sT1)}, 5
        s_add_u32 {s(sT2)}, {s(sT2)}, {s(sT0)}
        s_lshr_b32 {s(sT3)}, {s(sW)}, 1
        s_add_u32 {s(sT2)}, {s(sT2)}, {s(sT3)}
        s_lshl_b32 {s(sT2)}, {s(sT2)}, 10
        v_add_u32 v17, {s(sT2)}, v16
        v_xor_b32 v18, 64, v17
        v_add_u32 v18, {16384 - 1024}, v18
        s_lshl_b32 {s(sT0)}, {s(sRH)}, 6
        s_sub_u32 {s(sT0)}, {s(sT0)}, 16
        s_add_u32 {s(sT0)}, {s(sT0)}, {s(sT1)}
        s_lshl_b32 {s(sT0)}, {s(sT0)}, 10
        s_lshl_b32 {s(sT3)}, {s(sT3)}, 7
        s_add_u32 {s(sT0)}, {s(sT0)}, {s(sT3)}
        s_lshl_b32 {s(sT1)}, {s(sT1)}, 6
        v_xor_b32 v19, {s(sT1)}, v16
        v_add_u32 v19, {s(sT0)}, v19
        s_lshl_b32 {s(sT2)}, {s(sW)}, 11
        s_lshl_b32 {s(sT3)}, {s(sW)}, 10""")
        for kp in range(8):
            e(f"""
            s_add_u32 m0, {s(sT2)}, {LDS_X + kp * 8064}
            s_nop 0
            buffer_load_dwordx4 v17, {s(SRD_X,4)}, 0 offen offset:{kp*128} lds
            buffer_load_dwordx4 v18, {s(SRD_X,4)}, 0 offen offset:{kp*128+1024} lds""")
            if kp % 2 == 1:
                m = kp // 2
                e(f"""
                s_add_u32 m0, {s(sT3)}, {LDS_H + m * 3840}
                s_nop 0
                buffer_load_dwordx4 v19, {s(SRD_X,4)}, 0 offen offset:{m*256} lds""")
        qx = A.vm
        WA = 22; TRA = 23
        self.wdma_addr(WA, 3072, 12)
        e(f"s_mul_i32 {s(sT4)}, {s(sW)}, 3072")
        qw = {}
        for kk in range(6): qw[kk] = self.wdma(SRD_WA, WA, kk)
        self.xrow_addr(12, 13)
        e(f"""
        buffer_load_dwordx4 {v(vXO,4)}, v12, {s(SRD_X,4)}, 0 offen
        buffer_load_dwordx4 {v(vXO+4,4)}, v12, {s(SRD_X,4)}, 0 offen offset:64""")
        self.make_masks()
        self.tr_addr(TRA, 3072, 12, True)
        self.set_ones()
        self.lane(20)
        e(f"""
        v_bfe_u32 v21, v20, 1, 3
        v_lshrrev_b32 v12, 4, v20
        v_xor_b32 v21, v21, v12
        v_lshlrev_b32 v21, 4, v21
        v_and_b32 v12, 15, v20
        v_lshl_add_u32 v12, v12, 7, v21
        v_xor_b32 v13, 64, v12
        v_add_u32 v14, {LDS_H}, v12
        v_add_u32 v15, {LDS_H}, v13
        s_lshl_b32 {s(sT0)}, {s(sW)}, 11
        v_add_u32 v16, {s(sT0)}, v12
        v_add_u32 v17, {s(sT0)}, v13
        s_and_b32 {s(sT0)}, {s(sW)}, 1
        s_lshl_b32 {s(sT0)}, {s(sT0)}, 6
        v_xor_b32 v18, {s(sT0)}, v14
        s_lshr_b32 {s(sT0)}, {s(sW)}, 1
        s_lshl_b32 {s(sT0)}, {s(sT0)}, 11
        v_add_u32 v18, {s(sT0)}, v18""")
        A.wait(vm=qx, lg=A.lg)
        e("s_barrier")
        self.ts("x0")
        e(f"v_lshl_or_b32 {v(vPHI)}, v77, 16, v76\nv_lshl_or_b32 {v(vPHI+1)}, v79, 16, v78")
        sk = A.label()
        e(f"""
        s_cmp_lg_u32 {s(sW)}, 0
        s_cbranch_scc1 {sk}
        s_lshl_b32 {s(sT0)}, {s(sXC)}, 5
        s_lshr_b32 {s(sT1)}, s2, 3
        s_add_u32 {s(sT0)}, {s(sT0)}, {s(sT1)}
        v_mov_b32 v20, {s(sANN)}
        v_mov_b32 v21, 0
        s_mov_b64 exec, 1""")
        self.eu(f"buffer_store_byte v20, v21, {s(SRD_DBG,4)}, {s(sT0)} offen sc1")
        e("s_mov_b64 exec, -1")
        A.place(sk)
        fl = [(16 + (kk & 1), (kk >> 1) * 8192, 60) for kk in range(16)] + [(18, m * 4096, 68) for m in range(4)]
        rd = {}
        def issue(n): rd[n] = A.dsop(f"ds_read_b128 {v(RING+4*(n%8),4)}, {v(fl[n][0])} offset:{fl[n][1]}")
        for n in range(7): issue(n)
        for n in range(20):
            A.wait(lg=rd[n])
            x = v(RING + 4 * (n % 8), 4); b = fl[n][2]; first = n in (0, 16)
            self.mfma(v(b, 4), v(ONES, 4), x, "0" if first else v(b, 4))
            self.mfma(v(b + 4, 4), x, x, "0" if first else v(b + 4, 4))
            if n + 7 < 20: issue(n + 7)
        self.lane(20)
        e(f"""
        v_and_b32 v21, 3, v20
        v_and_b32 v20, 15, v20
        v_lshlrev_b32 v20, 2, v20""")
        for r in range(1, 4):
            e(f"""
            v_cmp_eq_u32 vcc, {r}, v21
            v_cndmask_b32 v64, v64, {v(64+r)}, vcc
            v_cndmask_b32 v72, v72, {v(72+r)}, vcc""")
        self.finish_stats(60, 64, None)
        e(f"""
        s_lshl_b32 {s(sT0)}, {s(sW)}, 6
        s_add_u32 {s(sT0)}, {s(sT0)}, {T_M}
        v_add_u32 v21, {s(sT0)}, v20
        s_lshl_b32 {s(sT0)}, {s(sW)}, 7
        s_add_u32 {s(sT0)}, {s(sT0)}, {T_HP}
        v_add_u32 v20, {s(sT0)}, v20
        s_mov_b64 exec, {s(sMD,2)}
        ds_write_b32 v21, v60
        ds_write_b32 v21, v64 offset:512
        ds_write_b32 v20, v68
        ds_write_b32 v20, v72 offset:64
        s_mov_b64 exec, -1""")
        self.ts("stats0")
        def xaddr(t, kk):
            if t == 4: return 14 + (kk & 1), (kk >> 1) * 2048
            return 12 + (kk & 1), (kk >> 1) * 8192 + t * 2048
        def mk(c):
            def f():
                A.wait(vm=qw[2 * c + 1], lg=A.lg if c < 1 else None)
                e("s_barrier")
                if c >= 1 and c + 2 < 8:
                    for kk in (2 * c + 4, 2 * c + 5): qw[kk] = self.wdma(SRD_WA, WA, kk)
            return f
        avail = {2 * c: mk(c) for c in range(8)}
        def halo_stats_a():
            self.lane(20)
            e(f"""
            v_and_b32 v21, 15, v20
            v_lshlrev_b32 v21, 2, v21
            v_lshrrev_b32 v20, 4, v20
            v_lshl_add_u32 v20, v20, 7, v21
            v_add_u32 v20, {T_HP}, v20""")
            self.qh = A.dsop("ds_read2_b32 v[16:17], v20 offset0:0 offset1:16")
        def halo_stats_b():
            A.wait(lg=self.qh)
            e("""
            v_permlane32_swap_b32 v16, v17
            v_add_f32 v16, v16, v17
            v_mov_b32 v17, v16
            v_permlane16_swap_b32 v16, v17
            v_add_f32 v16, v16, v17
            v_mov_b32 v17, v16
            v_permlane32_swap_b32 v16, v17""")
            self.finish_stats(16, 17, None)
            e(f"""
            v_add_u32 v21, {T_M + 256}, v21
            s_mov_b64 exec, 0xffff
            ds_write_b32 v21, v16
            ds_write_b32 v21, v17 offset:512
            s_mov_b64 exec, -1""")
        def dbg_load():
            e(f"v_lshrrev_b32 v20, 2, {v(vL16)}")
            self.qd = A.vmop(f"buffer_load_dword v16, v20, {s(SRD_DBG,4)}, 0 offen sc1")
        hooks = {(2, 0): halo_stats_a, (3, 0): halo_stats_b, (12, 0): dbg_load}
        self.gemm(0, (1, 2, 0), 5, xaddr, avail, staged={"va": TRA}, colsum=True, hooks=hooks)
        self.ts("gemm0")
        lp, ok = A.label(), A.label()
        A.wait(vm=self.qd)
        e(f"s_mov_b32 {s(sSPIN)}, 0x40000")
        A.place(lp)
        e(f"""
        v_and_b32 v17, 0x80808080, v16
        v_cmp_ne_u32 vcc, 0x80808080, v17
        s_cbranch_vccz {ok}
        s_sub_u32 {s(sSPIN)}, {s(sSPIN)}, 1
        s_cbranch_scc1 L_end""")
        self.eu(f"buffer_load_dword v16, v20, {s(SRD_DBG,4)}, 0 offen sc1")
        e(f"s_waitcnt vmcnt(0)\ns_branch {lp}")
        A.place(ok)
        e(f"""
        s_mul_i32 {s(sT0)}, {s(sANN)}, 0x01010101
        v_cmp_ne_u32 vcc, {s(sT0)}, v16
        s_lshl_b32 {s(sT1)}, {s(sXC)}, 3
        s_nop 1
        s_lshr_b64 vcc, vcc, {s(sT1)}
        s_and_b32 {s(sT0)}, vcc_lo, 0xff
        s_cselect_b32 {s(sLOC)}, 0, 1""")
        self.wdma_addr(20, 1024, 16)
        A.wait(lg=A.lg)
        e("s_barrier")
        self.wodma(SRD_WOA, 20)
        self.q_ls = self.lane_stats(5, 22)
        self.cs_save(0, 56)
        self.attn_A(0)

    def layer(self, L):
        A = self.A; e = self.e
        typ = L & 1; halo = (L == 2); staged = (L == 1)
        WA = 22; TRA = 23
        self.lane(12)
        e(f"""
        v_and_b32 v13, 7, v12
        v_lshlrev_b32 v13, 7, v13
        s_lshl_b32 {s(sT0)}, {s(sR)}, 10
        s_lshl_b32 {s(sT1)}, {s(sW)}, 2
        s_add_u32 {s(sT0)}, {s(sT0)}, {s(sT1)}
        s_add_u32 {s(sPO)}, {s(sT0)}, {WS_FLAG + (H_X + L - 1) * 32768}
        s_lshl_b32 {s(sT2)}, {s(sR)}, 16
        s_add_u32 {s(sT2)}, {s(sT2)}, {WS_X + (L - 1) * 32 * 65536 - LDS_X}
        v_add_u32 v14, {s(sT2)}, {v(vL16)}
        v_and_b32 v15, 15, v12
        v_lshlrev_b32 v15, 2, v15
        v_bfe_u32 v16, v12, 4, 1
        v_lshl_add_u32 v16, v16, 6, v15
        v_lshrrev_b32 v17, 5, v12
        v_lshl_add_u32 v16, v17, 9, v16
        s_lshl_b32 {s(sT3)}, {s(sR)}, 2
        s_add_u32 {s(sT3)}, {s(sT3)}, {s(sW)}
        s_lshl_b32 {s(sT3)}, {s(sT3)}, 10
        s_add_u32 {s(sT3)}, {s(sT3)}, {WS_ST + (L - 1) * 32 * 4096}
        s_lshl_b32 {s(sT5)}, {s(sW)}, 10""")
        qw = {}
        if staged:
            self.wdma_addr(WA, 3072, 18)
            self.tr_addr(TRA, 3072, 18, True)
            self.set_ones()
            e(f"s_mul_i32 {s(sT4)}, {s(sW)}, 3072")
            e("s_barrier")
        if halo:
            e(f"""
            v_bfe_u32 v18, v12, 1, 3
            v_and_b32 v19, 1, v12
            v_lshlrev_b32 v19, 3, v19
            v_lshl_add_u32 v18, v18, 7, v19
            v_add_u32 v18, 4, v18
            s_sub_u32 {s(sT4)}, {s(sRH)}, 1
            s_lshl_b32 {s(sT4)}, {s(sT4)}, 10
            s_add_u32 {s(sT4)}, {s(sT4)}, {WS_FLAG + H_HALO * 32768}
            s_lshl_b32 {s(sT2)}, {s(sRH)}, 14
            s_add_u32 {s(sT2)}, {s(sT2)}, {WS_H - LDS_H}
            v_add_u32 v19, {s(sT2)}, {v(vL16)}
            v_add_u32 v20, {LDS_H}, {v(vL16)}""")
        self.ts(f"prepoll{L}")
        self.poll(13, s(sPO), 21)
        if halo: self.poll(18, s(sT4), 21)
        self.ts(f"xpoll{L}")
        qx = {}
        for kk in range(16):
            e(f"s_add_u32 m0, {s(sT5)}, {LDS_X + kk * 4096}\ns_nop 0")
            qx[kk] = A.vmop(f"buffer_load_dwordx4 v14, {s(SRD_WS,4)}, m0 offen sc1 lds")
            if halo and kk % 4 == 0:
                e(f"s_add_u32 m0, {s(sT5)}, {LDS_H + kk * 1024}\ns_nop 0")
                qx[kk] = A.vmop(f"buffer_load_dwordx4 v19, {s(SRD_WS,4)}, m0 offen sc1 lds")
            if staged and kk == 1:
                for k2 in (0, 1): qw[k2] = self.wdma(SRD_WB, WA, k2)
        for q in range(4): qs = A.vmop(f"buffer_load_dword {v(CS+q)}, v16, {s(SRD_WS,4)}, {s(sT3)} offen offset:{128*q} sc1")
        if halo:
            e(f"s_lshl_b32 {s(sT3)}, {s(sRH)}, 10\ns_add_u32 {s(sT3)}, {s(sT3)}, {WS_HS}")
            for q in range(4): qs = A.vmop(f"buffer_load_dword {v(CS+4+q)}, v16, {s(SRD_WS,4)}, {s(sT3)} offen offset:{128*q} sc1")
        if staged:
            for k2 in range(2, 6): qw[k2] = self.wdma(SRD_WB, WA, k2)
        self.ts(f"xdma{L}")
        def stats():
            A.wait(vm=qs)
            for b, off in ([(CS, 0)] + ([(CS + 4, 1)] if halo else [])):
                e(f"""
                v_add_f32 {v(b)}, {v(b)}, {v(b+1)}
                v_add_f32 {v(b+2)}, {v(b+2)}, {v(b+3)}
                v_add_f32 {v(b)}, {v(b)}, {v(b+2)}
                v_mov_b32 {v(b+1)}, {v(b)}
                v_permlane32_swap_b32 {v(b)}, {v(b+1)}
                v_add_f32 {v(b)}, {v(b)}, {v(b+1)}
                v_mov_b32 {v(b+1)}, {v(b)}
                v_permlane16_swap_b32 {v(b)}, {v(b+1)}""")
                self.finish_stats(b, b + 1, None)
                if off == 0: e(f"s_lshl_b32 {s(sT0)}, {s(sW)}, 6\ns_add_u32 {s(sT0)}, {s(sT0)}, {T_M}\nv_add_u32 v17, {s(sT0)}, v15")
                else: e(f"v_add_u32 v17, {T_M + 256}, v15")
                e(f"""
                s_mov_b64 exec, 0xffff
                ds_write_b32 v17, {v(b)}
                ds_write_b32 v17, {v(b+1)} offset:512
                s_mov_b64 exec, -1""")
            self.q_st = A.lg
        def xaddr(t, kk):
            if t == 4: return 20, kk * 1024
            return vL16, kk * 4096 + t * 1024
        srd_wo = SRD_WOB if typ else SRD_WOA
        if staged:
            stats()
            def mk(c):
                def f():
                    A.wait(vm=max(qw[2 * c + 1], qx[min(15, 2 * c + 3)]), lg=A.lg if c < 1 else None)
                    e("s_barrier")
                    if c >= 1 and c + 2 < 8:
                        for kk in (2 * c + 4, 2 * c + 5): qw[kk] = self.wdma(SRD_WB, WA, kk)
                return f
            avail = {2 * c: mk(c) for c in range(8)}
            hooks = {}
        else:
            bounds = [0, 2, 4, 8, 16]
            def mk(c):
                def f():
                    hi = bounds[c + 1] - 1
                    need = max(qx[k] for k in range(hi + 1))
                    A.wait(vm=need, lg=self.q_st if c == 3 else None)
                    e("s_barrier")
                    if c == 0:
                        self.wdma_addr(WA, 1024, 18); self.wodma(srd_wo, WA)
                return f
            avail = {bounds[c]: mk(c) for c in range(4)}
            def cs(): self.q_cs = self.cs_load(typ, 12)
            hooks = {(2, 0): stats, (12, 0): cs}
        if typ == 0:
            self.gemm(0, (1, 2, 0), 5, xaddr, avail, hooks=hooks)
            self.ts(f"gemm{L}")
            self.q_ls = self.lane_stats(5, 22)
            self.attn_A(L)
        else:
            Lb = L >> 1
            self.gemm(1, (1, 2), 4, xaddr, avail, staged={"va": TRA} if staged else None, colsum=staged, hooks=hooks)
            self.ts(f"gemm{L}")
            if staged:
                self.wdma_addr(20, 1024, 16)
                A.wait(lg=A.lg)
                e("s_barrier")
                self.wodma(srd_wo, 20)
            self.q_ls = self.lane_stats(4, 22)
            if staged: self.cs_save(1, 56)
            self.kside_B(Lb)
            self.gemm(1, (0,), 4, xaddr, {}, ring=76, nring=12)
            self.ts(f"gemmq{L}")
            self.reduce_B(Lb)
            self.qside_B(L, Lb)

    def build(self):
        A = self.A; e = self.e
        self.prologue()
        self.layer0()
        self.outproj(0)
        for L in range(1, 4):
            self.layer(L); self.outproj(L)
        if self.dbg:
            self.ts("end")
            e(f"""
            s_lshl_b32 {s(sT0)}, s2, 2
            s_add_u32 {s(sT0)}, {s(sT0)}, {s(sW)}
            s_lshl_b32 {s(sT0)}, {s(sT0)}, 8
            s_add_u32 {s(sT0)}, {s(sT0)}, {WS_TS}
            v_lshrrev_b32 v12, 2, {v(vL16)}
            buffer_store_dword {v(vTS)}, v12, {s(SRD_WS,4)}, {s(sT0)} offen""")
        e("L_end:\ns_endpgm")
        nn = A.pad()
        return nn

HEADER = open("cdna_kernels/" + NAME + ".s.ref").read().split("; Override launch")[0]
if __name__ == "__main__":
    for dbg, fn in ((False, "cdna_kernels/" + NAME + ".s"), (True, "dbg.s")):
        g = Gen(dbg=dbg); nn = g.build()
        open(fn, "w").write(wrap(g.A.text() + "\n.fill 64, 4, 0xbf800000", lds=LDS_SIZE, header=HEADER))
        print(fn, "instructions", sum(1 for i in g.A.ins if i.ws), "nop states", nn)
        if dbg: open("tsnames.txt", "w").write("\n".join(g.tsnames))
```

```python
NAME = "interleave_layers__sliding_local_dilated__linear_kernel_hedgehog__prompt"
def wrap(body, grid=256, block=256, lds=0, kname=NAME + "_kernel", nvgpr=512, accum=256, header=""):
    return f"""{header}; @launch grid=({grid},1,1) block=({block},1,1) lds={lds}
.amdgcn_target "amdgcn-amd-amdhsa--gfx950"
.text
.globl {kname}
.p2align 8
.type {kname},@function
{kname}:
{body}
.section .rodata,"a"
.p2align 6
.amdhsa_kernel {kname}
  .amdhsa_next_free_vgpr {nvgpr}
  .amdhsa_next_free_sgpr 102
  .amdhsa_accum_offset {accum}
  .amdhsa_group_segment_fixed_size 0
  .amdhsa_kernarg_size 80
  .amdhsa_user_sgpr_count 2
  .amdhsa_user_sgpr_kernarg_segment_ptr 1
  .amdhsa_system_sgpr_workgroup_id_x 1
.end_amdhsa_kernel
"""
```

```python
import gen, collections
g = gen.Gen(dbg=True); g.build()
cur = "pre"; seg = collections.OrderedDict(); k = 0
names = g.tsnames
cnt = collections.Counter()
for i in g.A.ins:
    if i.mn == "s_memrealtime":
        seg[names[k]] = cnt; cnt = collections.Counter(); k += 1; continue
    if not i.ws: continue
    c = i.cls
    if c == "valu" and (i.trans or i.perml): c = "slow"
    if i.mn.startswith("s_waitcnt"): c = "wait"
    if c == "nop": cnt["nop"] += i.ws
    else: cnt[c] += 1
tot = collections.Counter()
for n, c in seg.items():
    cyc = 16 * c["mfma"]; oth = 4 * (c["valu"] + c["salu"] + c["ds"] + c["vmem"] + c["wait"] + c["nop"]) + 8 * c["slow"]
    print(f"{n:10s} mfma {c['mfma']:4d} valu {c['valu']:4d} slow {c['slow']:3d} salu {c['salu']:4d} ds {c['ds']:4d} vmem {c['vmem']:3d} wait {c['wait']:3d} nop {c['nop']:3d} | mfma cyc {cyc:5d} other cyc {oth:5d}")
    tot.update(c)
print(tot)
```
